```python
import torch

def _softmax(x, axis=-1):
    return torch.softmax(x, dim=axis)
def _gelu(x):
    return torch.nn.functional.gelu(x, approximate="tanh")
def _silu(x):
    return torch.nn.functional.silu(x)
def _sigmoid(x):
    return torch.sigmoid(x)
def _layernorm(x, axis=-1, eps=1e-5):
    m = x.mean(dim=axis, keepdim=True)
    v = x.var(dim=axis, keepdim=True, unbiased=False)
    return (x - m) / torch.sqrt(v + eps)
def _scatter_add(tgt, idx, src, axis=0):
    return tgt.clone().index_add_(axis, idx, src)
def _segment_sum(src, seg, n):
    out = torch.zeros((n,) + src.shape[1:], dtype=src.dtype)
    return out.index_add_(0, seg, src)
def _pad(x, pw):
    flat = tuple(v for pair in reversed(pw) for v in pair)
    return torch.nn.functional.pad(x, flat)

kernel_name = 'sequential_preLN__mha_block__mixer_s_mlp__prompt'

def setup_inputs():

    _w = (lambda a: (lambda t: t.to(torch.bfloat16) if t.is_floating_point() else t)(torch.as_tensor(a)))
    def _A_setup():
        B, S, D, H = 1, 2048, 512, 32
        return {
            "x": _w((lambda *s: torch.randn(*s, dtype=torch.bfloat16) * 0.05)(B, S, D)),
            "wqkv": _w((lambda *s: torch.randn(*s, dtype=torch.bfloat16) * 0.05)(D, 3 * D)),
            "wo": _w((lambda *s: torch.randn(*s, dtype=torch.bfloat16) * 0.05)(D, D)),
        }
    _A_in = _A_setup()

    def _B_setup():
        B, S, D, F = 1, 2048, 512, 1792
        return {
            "x":  _w((lambda *s: torch.randn(*s, dtype=torch.bfloat16) * 0.05)(B, S, D)),
            "w1": _w((lambda *s: torch.randn(*s, dtype=torch.bfloat16) * 3.2)(D, D) * (D ** -0.5)),
            "w2": _w((lambda *s: torch.randn(*s, dtype=torch.bfloat16) * 3.2)(D, D) * (D ** -0.5)),
            "w3": _w((lambda *s: torch.randn(*s, dtype=torch.bfloat16) * 3.2)(D, F) * (D ** -0.5)),
            "w4": _w((lambda *s: torch.randn(*s, dtype=torch.bfloat16) * 3.2)(F, D) * (F ** -0.5)),
        }
    _B_in = _B_setup()

    return {
        "A_x": _A_in["x"],
        "A_wqkv": _A_in["wqkv"],
        "A_wo": _A_in["wo"],
        "B_x": _B_in["x"],
        "B_w1": _B_in["w1"],
        "B_w2": _B_in["w2"],
        "B_w3": _B_in["w3"],
        "B_w4": _B_in["w4"],
    }

def reference(A_x, A_wqkv, A_wo, B_x, B_w1, B_w2, B_w3, B_w4):
    def _A_ref(x, wqkv, wo):
        B, S, D = x.shape
        H = 32
        Dh = D // H
        qkv = (lambda x, *d: x.permute(*d))((x @ wqkv).reshape(B, S, 3, H, Dh), 2, 0, 3, 1, 4)
        q, k, v = qkv[0], qkv[1], qkv[2]
        scores = torch.einsum("bhqd,bhkd->bhqk", q, k) * (Dh ** -0.5)
        p = _softmax(scores, axis=-1)
        o = torch.einsum("bhqk,bhkd->bhqd", p, v)
        return (lambda x, *d: x.permute(*d))(o, 0, 2, 1, 3).reshape(B, S, D) @ wo

    def _B_ref(x, w1, w2, w3, w4):
        B, S, D = x.shape
        h = _gelu(_layernorm(x, axis=-1) @ w1)
        c = D // 4
        g0 = _pad(h[:, :, 0*c:1*c], ((0, 0), (1, 0), (0, 0)))[:, :S, :]
        g1 = _pad(h[:, :, 1*c:2*c], ((0, 0), (0, 1), (0, 0)))[:, 1:, :]
        g2 = _pad(h[:, :, 2*c:3*c], ((0, 0), (2, 0), (0, 0)))[:, :S, :]
        g3 = _pad(h[:, :, 3*c:   ], ((0, 0), (0, 2), (0, 0)))[:, 2:, :]
        hs = torch.concatenate([g0, g1, g2, g3], axis=-1) @ w2
        x1 = x + hs
        h2 = _gelu(_layernorm(x1, axis=-1) @ w3) @ w4
        return x1 + h2

    x = A_x
    h = x + _A_ref(_layernorm(x, axis=-1), A_wqkv, A_wo)
    h2 = h + _B_ref(_layernorm(h, axis=-1), B_w1, B_w2, B_w3, B_w4)
    return h2
```

```python
import re
import copy

TRANS = ("v_exp_f32", "v_log_f32", "v_rcp_f32", "v_rsq_f32", "v_sqrt_f32", "v_sin_f32", "v_cos_f32")

_reg_re = re.compile(r"^(-|abs\()?([vsa])(\d+)\)?$|^(-|abs\()?([vsa])\[(\d+):(\d+)\]\)?$")


def regs_of(op):
    op = op.strip()
    m = _reg_re.match(op)
    if m:
        if m.group(2):
            return {(m.group(2), int(m.group(3)))}
        return {(m.group(5), i) for i in range(int(m.group(6)), int(m.group(7)) + 1)}
    if op in ("vcc", "vcc_lo", "vcc_hi"):
        return {("x", "vcc")}
    if op in ("exec", "exec_lo", "exec_hi"):
        return {("x", "exec")}
    if op == "m0":
        return {("x", "m0")}
    return set()


class Ins:
    __slots__ = ("text", "mn", "ops", "mods", "rd", "wr", "cls", "passes", "srcc", "srcab", "tag", "dpp", "states")

    def __init__(self, text, tag=None):
        self.text = text
        self.tag = tag
        t = text.split(";")[0].strip()
        parts = t.split(None, 1)
        self.mn = parts[0]
        rest = parts[1] if len(parts) > 1 else ""
        ops = [o.strip() for o in rest.split(",")] if rest else []
        mods = []
        fixed = []
        for o in ops:
            if fixed and fixed[-1].count("[") > fixed[-1].count("]"):
                fixed[-1] += "," + o
            else:
                fixed.append(o)
        ops = fixed
        if ops:
            last = ops[-1].split()
            ops[-1] = last[0] if last else ""
            mods = last[1:]
        self.ops = ops
        self.mods = mods
        self.rd, self.wr = set(), set()
        self.passes = 0
        self.srcc = set()
        self.srcab = set()
        self.dpp = "_dpp" in self.mn
        self.states = 1
        mn = self.mn
        R = [regs_of(o) for o in ops]
        if mn.startswith("v_mfma"):
            self.cls = "mfma"
            self.passes = 8 if "32x32" in mn else 4
            self.wr = R[0]
            self.srcab = R[1] | R[2]
            self.srcc = R[3]
            self.rd = self.srcab | self.srcc
        elif mn.startswith("v_"):
            self.cls = "valu"
            if mn.startswith("v_cmp"):
                self.wr = R[0]
                self.rd = set().union(*R[1:])
            elif mn.startswith("v_permlane"):
                self.wr = R[0] | R[1]
                self.rd = R[0] | R[1]
            elif mn.startswith(("v_add_co", "v_sub_co", "v_addc_co", "v_subb_co", "v_subrev_co")):
                self.wr = R[0] | R[1]
                self.rd = set().union(*R[2:])
            elif mn == "v_nop":
                pass
            else:
                self.wr = R[0]
                self.rd = set().union(*R[1:]) if len(R) > 1 else set()
                if mn.startswith(("v_fmac", "v_dot2c", "v_pk_fmac", "v_writelane")) or self.dpp or "sdwa" in mn:
                    self.rd |= R[0]
                if mn.startswith("v_cndmask") and len(R) == 3:
                    self.rd |= {("x", "vcc")}
        elif mn.startswith("ds_"):
            self.cls = "ds"
            if mn.startswith(("ds_read", "ds_bpermute", "ds_permute", "ds_swizzle")):
                self.wr = R[0]
                self.rd = set().union(*R[1:]) if len(R) > 1 else set()
            else:
                self.rd = set().union(*R)
            if "addtid" in mn:
                self.rd |= {("x", "m0")}
        elif mn.startswith(("buffer_", "global_")):
            self.cls = "vmem"
            if mn.startswith(("buffer_wbl2", "buffer_inv")):
                pass
            elif "load" in mn and "lds" in mods:
                self.rd = set().union(*R) | {("x", "m0")}
            elif "load" in mn:
                self.wr = R[0]
                self.rd = set().union(*R[1:])
            elif "atomic" in mn and "sc0" in mods:
                self.wr = R[0]
                self.rd = set().union(*R)
            else:
                self.rd = set().union(*R)
        elif mn.startswith(("s_load", "s_buffer_load", "s_memtime", "s_memrealtime")):
            self.cls = "smem"
            self.wr = R[0]
            self.rd = set().union(*R[1:]) if len(R) > 1 else set()
        elif mn.startswith("s_"):
            self.cls = "salu"
            if mn == "s_nop":
                self.states = int(ops[0], 0) + 1
            elif mn.startswith(("s_cmp", "s_bitcmp", "s_cbranch", "s_branch", "s_waitcnt", "s_barrier", "s_endpgm",
                                "s_sleep", "s_setprio", "s_setpc")):
                self.rd = set().union(*R) if R else set()
                if "vcc" in mn:
                    self.rd |= {("x", "vcc")}
            elif "saveexec" in mn:
                self.wr = R[0] | {("x", "exec")}
                self.rd = R[1] | {("x", "exec")}
            else:
                self.wr = R[0]
                self.rd = set().union(*R[1:]) if len(R) > 1 else set()
                if mn.startswith(("s_addk", "s_mulk")):
                    self.rd |= R[0]
        else:
            raise ValueError("unknown instr " + text)


def _only(rs, k):
    return {r for r in rs if r[0] == k}


def need_states(p, c):
    n = 0
    pv = _only(p.wr, "v")
    if p.cls == "valu":
        isdot = p.mn.startswith("v_dot")
        if c.cls == "mfma" and pv & c.rd:
            n = max(n, 3 if isdot else 2)
        if c.cls == "valu":
            if p.mn.startswith(TRANS) and not c.mn.startswith(TRANS) and pv & c.rd:
                n = max(n, 1)
            if c.mn.startswith(("v_readlane", "v_readfirstlane")) and pv & c.rd:
                n = max(n, 1)
            if (c.dpp or c.mn.startswith("v_permlane")) and pv & c.rd:
                n = max(n, 2)
            ps = {r for r in p.wr if r[0] == "s" or r == ("x", "vcc")}
            if ps & c.rd:
                n = max(n, 4 if c.mn.startswith(("v_readlane", "v_writelane")) else 2)
            if "sdwa" in p.mn and pv & (c.rd | c.wr):
                n = max(n, 1)
        if isdot and pv & (c.rd | c.wr) and c.cls in ("valu", "vmem", "ds", "mfma"):
            same_acc = c.mn == p.mn and not (pv & (regs_of(c.ops[1]) | regs_of(c.ops[2])))
            if not same_acc:
                n = max(n, 3)
        if c.cls == "vmem":
            ps = _only(p.wr, "s")
            if ps & c.rd:
                n = max(n, 5)
        if ("x", "exec") in p.wr:
            n = max(n, 5)
    elif p.cls == "mfma":
        tab = {4: (6, 8, 3), 8: (10, 12, 7)}[p.passes]
        if c.cls == "mfma":
            if pv & c.srcab:
                n = max(n, tab[1])
            if pv & c.srcc and not (pv == c.srcc and c.passes == p.passes):
                n = max(n, tab[0])
            if pv & c.wr and not (pv & c.srcc):
                n = max(n, tab[0])
        elif c.cls in ("valu", "vmem", "ds"):
            if pv & (c.rd | c.wr):
                n = max(n, tab[1])
            if c.cls == "valu" and p.srcc & c.wr:
                n = max(n, tab[2])
            if c.cls in ("vmem", "ds") and p.srcc & c.wr:
                n = max(n, tab[2])
    elif p.cls == "salu":
        if ("x", "m0") in p.wr and ("x", "m0") in c.rd and c.cls in ("vmem", "ds"):
            n = max(n, 1)
    elif p.cls == "vmem":
        if "store" in p.mn and p.mn.endswith(("x3", "x4")):
            data = regs_of(p.ops[0]) if p.mn.startswith("buffer") else regs_of(p.ops[1])
            if data & c.wr:
                n = max(n, 2 if c.cls in ("valu", "mfma") else 1)
    return n


class Asm:
    def __init__(self):
        self.out = []
        self.win = []
        self.vq = []
        self.lq = []
        self.ninstr = 0
        self.maxv = 0
        self.maxs = 0
        self.trace = False

    def raw(self, text):
        self.out.append(text)

    def comment(self, text):
        self.out.append("    ; " + text)

    def label(self, name, keep=False):
        self.out.append(name + ":")
        if not keep:
            assert not self.vq and not self.lq, "label %s with outstanding ops" % name
            self.win = []

    def state(self):
        return (list(self.win), list(self.vq), list(self.lq))

    def set_state(self, st):
        self.win, self.vq, self.lq = list(st[0]), list(st[1]), list(st[2])

    def _push(self, ins):
        self.out.append("    " + ins.text)
        self.win.append(ins)
        if len(self.win) > 24:
            self.win.pop(0)
        self.ninstr += 1
        for r in ins.rd | ins.wr:
            if r[0] == "v":
                self.maxv = max(self.maxv, r[1])
            elif r[0] == "s":
                self.maxs = max(self.maxs, r[1])

    def _apply_wait(self, ins):
        txt = " ".join(ins.ops + ins.mods)
        m = re.search(r"vmcnt\((\d+)\)", txt)
        if m:
            n = int(m.group(1))
            if len(self.vq) > n:
                self.vq = self.vq[len(self.vq) - n:] if n else []
        m = re.search(r"lgkmcnt\((\d+)\)", txt)
        if m:
            n = int(m.group(1))
            if n == 0:
                self.lq = []
            elif not any(e[1] for e in self.lq) and len(self.lq) > n:
                self.lq = self.lq[len(self.lq) - n:]

    def __call__(self, text, tag=None):
        for line in text.split("\n"):
            line = line.strip()
            if not line:
                continue
            if line.startswith(";"):
                self.out.append("    " + line)
                continue
            self._emit(Ins(line, tag))

    def _emit(self, ins):
        if ins.mn == "s_waitcnt":
            self._apply_wait(ins)
            self._push(ins)
            return
        touched = ins.rd | ins.wr
        vn = None
        for i, e in enumerate(self.vq):
            if e[0] & touched:
                vn = len(self.vq) - 1 - i
        ln = None
        anysm = any(e[1] for e in self.lq)
        for i, e in enumerate(self.lq):
            if e[0] & touched:
                ln = 0 if anysm else len(self.lq) - 1 - i
        if vn is not None or ln is not None:
            w = "s_waitcnt"
            if vn is not None:
                w += " vmcnt(%d)" % min(vn, 63)
            if ln is not None:
                w += " lgkmcnt(%d)" % min(ln, 15)
            wi = Ins(w)
            self._apply_wait(wi)
            self._push(wi)
        dist = 0
        need = 0
        for p in reversed(self.win):
            n = need_states(p, ins)
            if n > dist:
                need = max(need, n - dist)
            dist += p.states
            if dist > 20:
                break
        while need > 0:
            k = min(need, 16)
            self._push(Ins("s_nop %d" % (k - 1)))
            need -= k
        self._push(ins)
        if ins.cls == "vmem":
            self.vq.append((set(ins.wr), ins.tag))
            assert len(self.vq) <= 63, "too many outstanding vmem"
        elif ins.cls == "ds":
            self.lq.append((set(ins.wr), False, ins.tag))
            if len(self.lq) > 15 and not any(e[1] for e in self.lq):
                pass
        elif ins.cls == "smem":
            self.lq.append((set(ins.wr), True, ins.tag))

    def wait_vm(self, tag):
        n = None
        for i, e in enumerate(self.vq):
            if e[1] == tag:
                n = len(self.vq) - 1 - i
        if n is not None:
            self("s_waitcnt vmcnt(%d)" % n)

    def wait_lgkm(self, tag=None):
        if tag is None:
            if self.lq:
                self("s_waitcnt lgkmcnt(0)")
            return
        n = None
        for i, e in enumerate(self.lq):
            if e[2] == tag:
                n = len(self.lq) - 1 - i
        if n is not None:
            if any(e[1] for e in self.lq):
                n = 0
            self("s_waitcnt lgkmcnt(%d)" % min(n, 15))

    def wait_all(self):
        self("s_waitcnt vmcnt(0) lgkmcnt(0)")

    def text(self):
        return "\n".join(self.out) + "\n"


def vr(base, n=1):
    return "v%d" % base if n == 1 else "v[%d:%d]" % (base, base + n - 1)


def sr(base, n=1):
    return "s%d" % base if n == 1 else "s[%d:%d]" % (base, base + n - 1)
```

```python
from asmlib import *
import struct

MB = 1 << 20
KB = 1 << 10
WS_Q = 0
WS_K = 2 * MB
WS_V = 4 * MB
WS_O = 6 * MB
WS_H = 8 * MB
WS_A2 = 10 * MB
WS_X1 = 12 * MB
WS_F = 14 * MB
WS_PWO = 21 * MB
WS_PW1 = 21 * MB + 512 * KB
WS_PW2 = 22 * MB
WS_PW3 = 22 * MB + 512 * KB
WS_PW4 = 24 * MB + 256 * KB
WS_END = 26 * MB
WS_BYTES = 256 * MB

KA_X, KA_WQKV, KA_WO, KA_BX, KA_W1, KA_W2, KA_W3, KA_W4, KA_OUT, KA_DBG, KA_WS = [8 * i for i in range(11)]


def f32(x):
    return "0x%08x" % struct.unpack("<I", struct.pack("<f", x))[0]


def kernel_begin(a, name):
    a.raw(".globl %s" % name)
    a.raw(".p2align 8")
    a.raw(".type %s,@function" % name)
    a.raw("%s:" % name)
    a.win, a.vq, a.lq = [], [], []
    a.maxv = 0
    a.maxs = 0


def kernel_desc(name, nv, ns):
    nv4 = (nv + 3) // 4 * 4
    return "\n".join([
        ".p2align 6",
        ".amdhsa_kernel %s" % name,
        "  .amdhsa_next_free_vgpr %d" % nv4,
        "  .amdhsa_next_free_sgpr %d" % ns,
        "  .amdhsa_accum_offset %d" % nv4,
        "  .amdhsa_group_segment_fixed_size 0",
        "  .amdhsa_kernarg_size 88",
        "  .amdhsa_user_sgpr_count 2",
        "  .amdhsa_user_sgpr_kernarg_segment_ptr 1",
        "  .amdhsa_system_sgpr_workgroup_id_x 1",
        ".end_amdhsa_kernel"])


def make_srd(a, d, p, nbytes):
    a("s_mov_b32 s%d, s%d" % (d, p))
    a("s_and_b32 s%d, s%d, 0xffff" % (d + 1, p + 1))
    a("s_mov_b32 s%d, 0x%x" % (d + 2, nbytes))
    a("s_mov_b32 s%d, 0x20000" % (d + 3))


def interleave(main, extra, start=0, every=1):
    out = []
    k = 0
    for i, m in enumerate(main):
        if k < len(extra) and i >= start and (i - start) % every == 0:
            out.append(extra[k])
            k += 1
        out.append(m)
    out.extend(extra[k:])
    return out


def emit_list(a, items):
    for it in items:
        if callable(it):
            it()
        elif isinstance(it, tuple):
            a(it[0], tag=it[1])
        else:
            a(it)


def tr_lane_addr(a, vd, vl, vt0, vt1, hk_stride):
    a("v_lshrrev_b32 v%d, 5, v%d" % (vd, vl))
    a("v_mul_u32_u24 v%d, %d, v%d" % (vd, hk_stride, vd))
    a("v_bfe_u32 v%d, v%d, 2, 2" % (vt0, vl))
    a("v_lshl_add_u32 v%d, v%d, 7, v%d" % (vd, vt0, vd))
    a("v_bfe_u32 v%d, v%d, 3, 1" % (vt0, vl))
    a("v_lshl_add_u32 v%d, v%d, 6, v%d" % (vd, vt0, vd))
    a("v_bfe_u32 v%d, v%d, 4, 1" % (vt0, vl))
    a("v_lshl_add_u32 v%d, v%d, 5, v%d" % (vd, vt0, vd))
    a("v_and_b32 v%d, 1, v%d" % (vt0, vl))
    a("v_lshl_add_u32 v%d, v%d, 4, v%d" % (vd, vt0, vd))
    a("v_bfe_u32 v%d, v%d, 1, 1" % (vt0, vl))
    a("v_lshl_add_u32 v%d, v%d, 3, v%d" % (vd, vt0, vd))


def dma_src_piece(a, vd, vl, vt0):
    a("v_bfe_u32 v%d, v%d, 4, 1" % (vt0, vl))
    a("v_lshlrev_b32 v%d, 2, v%d" % (vt0, vt0))
    a("v_and_b32 v%d, 7, v%d" % (vd, vl))
    a("v_xor_b32 v%d, v%d, v%d" % (vd, vd, vt0))
    a("v_lshlrev_b32 v%d, 4, v%d" % (vd, vd))
```

```python
from common import *

NAME = "pack_kernel"
GRID, BLOCK, LDS = 320, 512, 16384


def gen(a):
    kernel_begin(a, NAME)
    a("s_cmp_ge_u32 s2, %d" % GRID)
    a("s_cbranch_scc1 L_k0_end")
    a("s_load_dwordx2 s[4:5], s[0:1], %d" % KA_WO)
    a("s_load_dwordx4 s[8:11], s[0:1], %d" % KA_W1)
    a("s_load_dwordx4 s[12:15], s[0:1], %d" % KA_W3)
    a("s_load_dwordx2 s[6:7], s[0:1], %d" % KA_WS)
    a("v_lshrrev_b32 v1, 6, v0")
    a("v_and_b32 v2, 63, v0")
    a("v_readfirstlane_b32 s3, v1")
    a("s_waitcnt lgkmcnt(0)")
    make_srd(a, 20, 6, WS_BYTES)
    a("s_lshl_b32 s16, s2, 13")
    a("v_lshlrev_b32 v3, 4, v0")
    a("v_add_u32 v3, s16, v3")
    for i in range(4):
        a("v_mov_b32 v%d, -1" % (4 + i))
    for i in range(6):
        a("s_mov_b32 s17, 0x%x" % (WS_O + i * GRID * BLOCK * 16))
        a("buffer_store_dwordx4 v[4:7], v3, s[20:23], s17 offen sc1")
    a("s_lshl_b32 s16, s2, 3")
    a("s_add_u32 s16, s16, s3")
    a("s_cmp_ge_u32 s16, 768")
    a("s_cbranch_scc1 L_k0_big")
    a("s_lshr_b32 s17, s16, 8")
    a("s_and_b32 s18, s16, 255")
    a("s_lshr_b32 s27, s18, 3")
    a("s_and_b32 s28, s18, 7")
    a("s_mov_b32 s26, 1024")
    a("s_mov_b32 s30, 32")
    a("s_mov_b32 s32, 0x80000")
    a("s_bfe_u32 s31, s27, 0x10003")
    a("s_lshl_b32 s29, s17, 19")
    a("s_add_u32 s29, s29, 0x%x" % WS_PWO)
    a("s_cmp_eq_u32 s17, 1")
    a("s_cselect_b32 s24, s8, s4")
    a("s_cselect_b32 s25, s9, s5")
    a("s_cmp_eq_u32 s17, 2")
    a("s_cselect_b32 s24, s10, s24")
    a("s_cselect_b32 s25, s11, s25")
    a("s_branch L_k0_go")
    st = a.state()
    a.label("L_k0_big", keep=True)
    a("s_cmp_ge_u32 s16, 1664")
    a("s_cbranch_scc1 L_k0_w4")
    a("s_sub_u32 s18, s16, 768")
    a("s_mul_hi_u32 s27, s18, 0x%x" % ((1 << 32) // 28 + 1))
    a("s_mul_i32 s17, s27, 28")
    a("s_sub_u32 s28, s18, s17")
    a("s_mov_b32 s26, 3584")
    a("s_mov_b32 s30, 32")
    a("s_mov_b32 s32, 0x%x" % (512 * 1792 * 2))
    a("s_mov_b32 s31, 0")
    a("s_mov_b32 s29, 0x%x" % WS_PW3)
    a("s_mov_b32 s24, s12")
    a("s_mov_b32 s25, s13")
    a("s_branch L_k0_go")
    a.label("L_k0_w4", keep=True)
    a("s_sub_u32 s18, s16, 1664")
    a("s_lshr_b32 s27, s18, 3")
    a("s_and_b32 s28, s18, 7")
    a("s_mov_b32 s26, 1024")
    a("s_mov_b32 s30, 112")
    a("s_mov_b32 s32, 0x%x" % (512 * 1792 * 2))
    a("s_mul_hi_u32 s31, s27, 0x%x" % ((1 << 32) // 28 + 1))
    a("s_and_b32 s31, s31, 1")
    a("s_mov_b32 s29, 0x%x" % WS_PW4)
    a("s_mov_b32 s24, s14")
    a("s_mov_b32 s25, s15")
    a.label("L_k0_go", keep=True)
    a("s_mov_b32 s36, s24")
    a("s_and_b32 s37, s25, 0xffff")
    a("s_mov_b32 s38, s32")
    a("s_mov_b32 s39, 0x20000")
    dma_src_piece(a, 8, 2, 9)
    a("v_lshrrev_b32 v9, 3, v2")
    a("s_lshl_b32 s17, s27, 4")
    a("v_add_u32 v9, s17, v9")
    a("v_mul_lo_u32 v9, v9, s26")
    a("v_add_u32 v8, v8, v9")
    a("s_lshl_b32 s17, s28, 7")
    a("v_add_u32 v8, s17, v8")
    a("s_lshl_b32 s18, s26, 3")
    a("s_lshl_b32 s19, s3, 11")
    a("s_mov_b32 m0, s19")
    a("buffer_load_dwordx4 v8, s[36:39], 0 offen lds")
    a("s_add_u32 m0, s19, 1024")
    a("buffer_load_dwordx4 v8, s[36:39], s18 offen lds")
    tr_lane_addr(a, 10, 2, 11, 12, 1024)
    a("s_lshl_b32 s17, s31, 5")
    a("v_xor_b32 v10, s17, v10")
    a("v_add_u32 v10, s19, v10")
    a("v_xor_b32 v11, 64, v10")
    a("s_mul_i32 s17, s28, s30")
    a("s_lshl_b32 s17, s17, 1")
    a("s_add_u32 s17, s17, s27")
    a("s_lshl_b32 s17, s17, 10")
    a("s_add_u32 s17, s17, s29")
    a("s_lshl_b32 s18, s30, 10")
    a("s_add_u32 s18, s18, s17")
    a("v_lshlrev_b32 v12, 4, v2")
    a("s_waitcnt vmcnt(0)")
    a("ds_read_b64_tr_b16 v[16:17], v10")
    a("ds_read_b64_tr_b16 v[18:19], v10 offset:512")
    a("ds_read_b64_tr_b16 v[20:21], v11")
    a("ds_read_b64_tr_b16 v[22:23], v11 offset:512")
    a("buffer_store_dwordx4 v[16:19], v12, s[20:23], s17 offen")
    a("buffer_store_dwordx4 v[20:23], v12, s[20:23], s18 offen")
    a.vq, a.lq = [], []
    a.label("L_k0_end")
    a("s_endpgm")
    return kernel_desc(NAME, a.maxv + 1, a.maxs + 1)
```

```python
from common import *
import math

NAME = "qkv_kernel"
GRID, BLOCK, LDS = 256, 512, 163840
RING = 65536
SLOT = 24576
QSCALE = 0.25 * math.log2(math.e)


def gen(a):
    kernel_begin(a, NAME)
    a("s_cmp_ge_u32 s2, %d" % GRID)
    a("s_cbranch_scc1 L_k1_end")
    a("s_load_dwordx4 s[4:7], s[0:1], %d" % KA_X)
    a("s_load_dwordx2 s[8:9], s[0:1], %d" % KA_WS)
    a("v_lshrrev_b32 v2, 6, v0")
    a("v_and_b32 v1, 63, v0")
    a("v_readfirstlane_b32 s3, v2")
    a("s_and_b32 s10, s2, 7")
    a("s_lshl_b32 s10, s10, 2")
    a("s_lshr_b32 s11, s2, 6")
    a("s_add_u32 s10, s10, s11")
    a("s_bfe_u32 s11, s2, 0x30003")
    a("v_lshrrev_b32 v3, 3, v0")
    a("v_and_b32 v4, 7, v0")
    a("v_lshlrev_b32 v5, 10, v3")
    a("v_lshl_add_u32 v5, v4, 4, v5")
    a("s_lshl_b32 s24, s10, 16")
    dma_src_piece(a, 6, 1, 7)
    a("v_lshrrev_b32 v7, 3, v1")
    a("v_mul_u32_u24 v7, 3072, v7")
    a("v_add_u32 v6, v6, v7")
    a("s_lshl_b32 s25, s11, 7")
    a("v_add_u32 v6, s25, v6")
    a("s_waitcnt lgkmcnt(0)")
    make_srd(a, 12, 4, 2 * MB)
    make_srd(a, 16, 6, 512 * 1536 * 2)
    make_srd(a, 20, 8, WS_BYTES)
    X = 16
    for i in range(8):
        a("buffer_load_dwordx4 %s, v5, s[12:15], s24 offen offset:%d" % (vr(X + 4 * i, 4), 128 * i))
    a("s_mul_i32 s26, s3, 24576")
    a("s_mul_i32 s27, s3, 3072")
    a("s_add_u32 s27, s27, %d" % RING)

    def dma(c, soff_reg, m0_reg, extra_src=0, extra_lds=0):
        ls = []
        ls.append("s_add_u32 s28, s%d, %d" % (soff_reg, c * 196608 + extra_src))
        ls.append("s_add_u32 m0, s%d, %d" % (m0_reg, (c % 4) * SLOT + extra_lds))
        for seg in range(3):
            ls.append(("buffer_load_dwordx4 v6, s[16:19], s28 offen offset:%d lds" % (seg * 1024), "w%d" % c))
        return ls

    emit_list(a, dma(0, 26, 27))
    a("v_lshrrev_b32 v8, 3, v1")
    a("v_xor_b32 v8, v8, v4")
    a("v_lshlrev_b32 v8, 4, v8")
    a("v_lshl_add_u32 v8, v3, 10, v8")
    a("s_and_b32 s29, s3, 1")
    a("s_lshl_b32 s29, s29, 7")
    a("v_add_u32 v8, s29, v8")
    a("v_xor_b32 v9, 0x80, v8")
    a("s_mov_b32 s30, 0x3f803f80")
    a("v_mov_b32 v10, 0")
    a("v_mov_b32 v11, 0")
    a("v_mov_b32 v12, 0")
    a("v_mov_b32 v13, 0")
    main = []
    for r in range(32):
        main.append("v_dot2c_f32_bf16 v%d, s30, v%d" % (10 + 2 * (r & 1), X + r))
        main.append("v_dot2c_f32_bf16 v%d, v%d, v%d" % (11 + 2 * (r & 1), X + r, X + r))
    main.append("v_add_f32 v10, v10, v12")
    main.append("v_add_f32 v11, v11, v13")
    for m in ("quad_perm:[1,0,3,2]", "quad_perm:[2,3,0,1]", "row_half_mirror"):
        main.append("v_add_f32_dpp v10, v10, v10 %s row_mask:0xf bank_mask:0xf" % m)
        main.append("v_add_f32_dpp v11, v11, v11 %s row_mask:0xf bank_mask:0xf" % m)
    main.append("v_mul_f32 v10, %s, v10" % f32(1.0 / 512))
    main.append("v_mul_f32 v11, %s, v11" % f32(1.0 / 512))
    main.append("v_fma_f32 v11, -v10, v10, v11")
    main.append("v_max_f32 v11, 0, v11")
    main.append("v_add_f32 v11, %s, v11" % f32(1e-5))
    main.append("v_rsq_f32 v11, v11")
    main.append("v_mul_f32 v10, v10, v11")
    main.append("v_sub_f32 v10, 0, v10")
    for i in range(8):
        for j in range(4):
            r = X + 4 * i + j
            main.append("v_lshlrev_b32 v12, 16, v%d" % r)
            main.append("v_and_b32 v13, 0xffff0000, v%d" % r)
            main.append("v_fma_f32 v12, v12, v11, v10")
            main.append("v_fma_f32 v13, v13, v11, v10")
            main.append("v_cvt_pk_bf16_f32 v%d, v12, v13" % r)
        main.append("ds_write_b128 v%d, %s offset:%d" % (8 + (i & 1), vr(X + 4 * i, 4), (i // 2) * 256))
    extra = []
    for c in (1, 2, 3):
        d = dma(c, 26, 27)
        extra.append(lambda d=d: emit_list(a, d[:3]))
        extra.append(d[3])
        extra.append(d[4])
    emit_list(a, interleave(main, extra, start=70, every=18))

    a("s_cmp_ge_u32 s3, 4")
    a("s_cbranch_scc1 L_k1_loader")
    st = a.state()
    AF = 14
    a("v_and_b32 v2, 31, v1")
    a("v_lshrrev_b32 v3, 5, v1")
    a("v_and_b32 v4, 15, v1")
    a("v_xor_b32 v4, v4, v3")
    a("v_lshlrev_b32 v4, 4, v4")
    a("v_lshl_add_u32 v4, v2, 10, v4")
    a("s_lshr_b32 s31, s3, 1")
    a("s_lshl_b32 s32, s31, 15")
    a("v_add_u32 v48, s32, v4")
    for k in range(1, 8):
        a("v_xor_b32 v%d, %d, v48" % (48 + k, k * 32))
    tr_lane_addr(a, 56, 1, 2, 3, 3072)
    a("s_and_b32 s33, s3, 1")
    a("s_lshl_b32 s34, s33, 6")
    a("v_xor_b32 v56, s34, v56")
    a("v_add_u32 v56, %d, v56" % RING)
    a("v_add_u32 v57, %d, v56" % (2 * SLOT))
    ACC = 64
    FB = [112, 128]
    for i in range(48):
        a("v_mov_b32 v%d, 0" % (ACC + i))

    def rdA(ks):
        b = FB[ks & 1]
        a("ds_read_b128 %s, v%d offset:%d" % (vr(b, 4), 48 + (ks % 8), (ks // 8) * 256))

    def rdW(ks):
        b = FB[ks & 1] + 4
        c, kl = ks // 4, ks % 4
        slot = c % 4
        base = 56 + (slot // 2)
        for seg in range(3):
            off = (slot % 2) * SLOT + kl * 6144 + seg * 1024
            a("ds_read_b64_tr_b16 %s, v%d offset:%d" % (vr(b + 4 * seg, 2), base, off))
            a("ds_read_b64_tr_b16 %s, v%d offset:%d" % (vr(b + 4 * seg + 2, 2), base, off + 512))

    def mm(ks):
        b = FB[ks & 1]
        x = vr(b, 4)
        a("v_mfma_f32_32x32x16_bf16 %s, %s, %s, %s" % (vr(ACC, 16), vr(b + 4, 4), x, vr(ACC, 16)))
        a("v_mfma_f32_32x32x16_bf16 %s, %s, %s, %s" % (vr(ACC + 16, 16), vr(b + 8, 4), x, vr(ACC + 16, 16)))
        a("v_mfma_f32_32x32x16_bf16 %s, %s, %s, %s" % (vr(ACC + 32, 16), x, vr(b + 12, 4), vr(ACC + 32, 16)))

    for c in range(8):
        a.wait_vm("w%d" % c)
        a.wait_lgkm()
        a("s_barrier")
        rdA(4 * c)
        rdW(4 * c)
        for kl in range(4):
            ks = 4 * c + kl
            if kl < 3:
                rdA(ks + 1)
                rdW(ks + 1)
            mm(ks)
    a("s_lshl_b32 s35, s10, 1")
    a("s_add_u32 s35, s35, s31")
    a("s_lshl_b32 s36, s11, 2")
    a("s_lshl_b32 s37, s33, 1")
    a("s_add_u32 s36, s36, s37")
    a("s_lshl_b32 s37, s36, 16")
    a("s_lshl_b32 s38, s35, 10")
    a("s_add_u32 s37, s37, s38")
    a("s_add_u32 s38, s37, 0x%x" % WS_Q)
    a("s_add_u32 s39, s37, 0x%x" % WS_K)
    a("s_add_u32 s40, s37, 0x%x" % WS_V)
    a("v_lshlrev_b32 v2, 4, v1")
    a("v_add_u32 v3, 0x10000, v2")
    a("v_and_b32 v4, 15, v1")
    a("v_lshlrev_b32 v4, 4, v4")
    a("v_lshrrev_b32 v5, 5, v1")
    a("v_lshl_add_u32 v4, v5, 8, v4")
    a("v_bfe_u32 v5, v1, 4, 1")
    a("v_lshl_add_u32 v4, v5, 16, v4")
    a("s_mov_b32 s41, %s" % f32(QSCALE))
    for i in range(16):
        a("v_mul_f32 v%d, s41, v%d" % (ACC + i, ACC + i))
    for t in range(3):
        for i in range(8):
            a("v_cvt_pk_bf16_f32 v%d, v%d, v%d" % (X + 8 * t + i, ACC + 16 * t + 2 * i, ACC + 16 * t + 2 * i + 1))
        if t < 2:
            a("buffer_store_dwordx4 %s, v2, s[20:23], s%d offen" % (vr(X + 8 * t, 4), 38 + t))
            a("buffer_store_dwordx4 %s, v3, s[20:23], s%d offen" % (vr(X + 8 * t + 4, 4), 38 + t))
        else:
            a("buffer_store_dwordx4 %s, v4, s[20:23], s40 offen" % vr(X + 8 * t, 4))
            a("buffer_store_dwordx4 %s, v4, s[20:23], s40 offen offset:512" % vr(X + 8 * t + 4, 4))
    a("s_endpgm")
    a.set_state(st)
    a.label("L_k1_loader", keep=True)
    a("s_sub_u32 s31, s3, 4")
    a("s_mul_i32 s26, s31, 49152")
    a("s_mul_i32 s27, s31, 6144")
    a("s_add_u32 s27, s27, %d" % RING)
    for c in range(8):
        a.wait_vm("w%d" % c)
        a.wait_lgkm()
        a("s_barrier")
        if 1 <= c and c + 3 <= 7:
            emit_list(a, dma(c + 3, 26, 27))
            emit_list(a, dma(c + 3, 26, 27, 24576, 3072))
    a.vq, a.lq = [], []
    a.label("L_k1_end")
    a("s_endpgm")
    return kernel_desc(NAME, a.maxv + 1, a.maxs + 1)
```

```python
from common import *
import math

NAME = "main_kernel"
GRID, BLOCK, LDS = 256, 512, 163840
STF = "sc1"
LDF = "sc1"
RETRY_MAX = 4000

LDS_V = 65536
LDS_ST = 65536
LDS_RED = 114688

S_WAVE = 3
SRD_X, SRD_WS, SRD_OUT = 12, 16, 20
S_QB, S_HEAD, S_G, S_J, S_NI, S_KQ, S_MTO, S_HALF = 10, 11, 24, 25, 26, 27, 28, 29
S_T0, S_T1, S_T2, S_T3 = 30, 31, 32, 33
S_VMASK = 34
S_RETRY = 36
S_ONES = 37
S_KVS, S_KVM = 38, 39
S_OUTBLK = 40
S_GB = 41
S_WOFF = 42
S_C1 = 43
S_DELTA = 44
S_FB = 45

V_LANE, V_L16, V_L16B = 1, 2, 3
V_OFF = 4
V_Q, V_K, V_V, V_P, V_C, V_S, V_O = 12, 16, 24, 40, 48, 64, 96
V_KA, V_VA, V_DMA = 112, 113, 114
V_A = 16
V_FR = 72
V_ACC = 88
V_RED = 16
V_H, V_Y = 120, 128
V_XR = 136
V_RA, V_RB, V_RW, V_RR = 140, 141, 142, 145
V_T = 146
W_WO, W_W1, W_W2 = 160, 192, 224
W_W3 = 128
W_W4 = 144

GELU_C1 = -2.0 * math.sqrt(2.0 / math.pi) * math.log2(math.e)
GELU_C2 = GELU_C1 * 0.044715


def gelu(regs, tmp):
    ls = []
    for r, t in zip(regs, tmp):
        ls.append("v_fmaak_f32 v%d, v%d, v%d, %s" % (t, r, r, f32(1.0 / 0.044715)))
    for r, t in zip(regs, tmp):
        ls.append("v_mul_f32 v%d, v%d, v%d" % (t, t, r))
    for r, t in zip(regs, tmp):
        ls.append("v_mul_f32 v%d, %s, v%d" % (t, f32(GELU_C2), t))
    for r, t in zip(regs, tmp):
        ls.append("v_exp_f32 v%d, v%d" % (t, t))
    for r, t in zip(regs, tmp):
        ls.append("v_add_f32 v%d, 1.0, v%d" % (t, t))
    for r, t in zip(regs, tmp):
        ls.append("v_rcp_f32 v%d, v%d" % (t, t))
    for r, t in zip(regs, tmp):
        ls.append("v_mul_f32 v%d, v%d, v%d" % (r, r, t))
    return ls


class K2:
    def __init__(self, a):
        self.a = a
        self.ool = []
        self.nlab = 0

    def prologue(self):
        a = self.a
        a("s_cmp_ge_u32 s2, %d" % GRID)
        a("s_cbranch_scc1 L_k2_end")
        a("s_load_dwordx2 s[4:5], s[0:1], %d" % KA_X)
        a("s_load_dwordx2 s[6:7], s[0:1], %d" % KA_OUT)
        a("s_load_dwordx2 s[8:9], s[0:1], %d" % KA_WS)
        a("v_lshrrev_b32 v2, 6, v0")
        a("v_and_b32 v%d, 63, v0" % V_LANE)
        a("v_readfirstlane_b32 s%d, v2" % S_WAVE)
        a("s_and_b32 s%d, s2, 7" % S_QB)
        a("s_lshr_b32 s%d, s2, 3" % S_HEAD)
        a("v_lshlrev_b32 v%d, 4, v%d" % (V_L16, V_LANE))
        a("v_add_u32 v%d, 0x1000, v%d" % (V_L16B, V_L16))
        a("v_lshlrev_b32 v%d, 4, v0" % V_DMA)
        a("s_lshl_b32 s%d, s%d, 16" % (S_KVS, S_HEAD))
        a("s_lshl_b32 s%d, s%d, 10" % (S_KVM, S_WAVE))
        a("s_waitcnt lgkmcnt(0)")
        make_srd(a, SRD_WS, 8, WS_BYTES)
        make_srd(a, SRD_X, 4, 2 * MB)
        make_srd(a, SRD_OUT, 6, 2 * MB)

    def kv_dma(self, c, which):
        base = WS_K if which == 0 else WS_V
        return [
            "s_add_u32 s%d, s%d, 0x%x" % (S_T0, S_KVS, base + c * 8192),
            "s_add_u32 m0, s%d, 0x%x" % (S_KVM, which * LDS_V + c * 8192),
            ("buffer_load_dwordx4 v%d, s[16:19], s%d offen lds" % (V_DMA, S_T0), "kv%d" % c)]

    def stage_consts(self):
        a = self.a
        a("s_lshl_b32 s%d, s%d, 2" % (S_G, S_QB))
        a("s_lshr_b32 s%d, s%d, 3" % (S_T0, S_HEAD))
        a("s_add_u32 s%d, s%d, s%d" % (S_G, S_G, S_T0))
        a("s_and_b32 s%d, s%d, 7" % (S_J, S_HEAD))
        a("s_and_b32 s%d, s%d, 1" % (S_NI, S_WAVE))
        a("s_lshr_b32 s%d, s%d, 1" % (S_KQ, S_WAVE))
        a("s_lshr_b32 s%d, s%d, 1" % (S_MTO, S_KQ))
        a("s_and_b32 s%d, s%d, 1" % (S_HALF, S_KQ))
        a("s_lshl_b32 s%d, s%d, 16" % (S_GB, S_G))
        a("s_lshl_b32 s%d, s%d, 5" % (S_T0, S_MTO))
        a("s_lshl_b32 s%d, s%d, 2" % (S_T1, S_J))
        a("s_add_u32 s%d, s%d, s%d" % (S_T0, S_T0, S_T1))
        a("s_lshl_b32 s%d, s%d, 1" % (S_T1, S_NI))
        a("s_add_u32 s%d, s%d, s%d" % (S_T0, S_T0, S_T1))
        a("s_add_u32 s%d, s%d, s%d" % (S_T0, S_T0, S_HALF))
        a("s_lshl_b32 s%d, s%d, 10" % (S_T0, S_T0))
        a("s_add_u32 s%d, s%d, s%d" % (S_OUTBLK, S_T0, S_GB))
        a("s_lshl_b32 s%d, s%d, 1" % (S_T0, S_J))
        a("s_add_u32 s%d, s%d, s%d" % (S_T0, S_T0, S_NI))
        a("s_lshl_b32 s%d, s%d, 15" % (S_T0, S_T0))
        a("s_lshl_b32 s%d, s%d, 13" % (S_T1, S_KQ))
        a("s_add_u32 s%d, s%d, s%d" % (S_WOFF, S_T0, S_T1))
        a("s_mov_b32 s%d, 0x3f803f80" % S_ONES)
        a("s_mov_b32 s%d, %s" % (S_C1, f32(GELU_C2)))
        a("s_lshl_b32 s%d, s%d, 13" % (S_T0, S_WAVE))
        a("s_lshl_b32 s%d, s%d, 10" % (S_T1, S_J))
        a("s_add_u32 s%d, s%d, s%d" % (S_T0, S_T0, S_T1))
        a("v_add_u32 v%d, s%d, v%d" % (V_OFF, S_T0, V_L16))
        for i in range(1, 8):
            a("v_xor_b32 v%d, 0x%x, v%d" % (V_OFF + i, i * 1024, V_OFF))
        a("s_lshl_b32 s%d, s%d, 15" % (S_T0, S_MTO))
        a("s_lshl_b32 s%d, s%d, 13" % (S_T1, S_KQ))
        a("s_add_u32 s%d, s%d, s%d" % (S_T0, S_T0, S_T1))
        a("v_add_u32 v%d, s%d, v%d" % (V_RA, S_T0, V_L16))
        a("v_xor_b32 v%d, 0x8000, v%d" % (V_RB, V_RA))
        for x in (1, 2, 3):
            a("s_xor_b32 s%d, s%d, %d" % (S_T0, S_WAVE, x << 1))
            a("s_mul_i32 s%d, s%d, 6144" % (S_T0, S_T0))
            a("s_add_u32 s%d, s%d, %d" % (S_T0, S_T0, LDS_RED + (x - 1) * 2048))
            a("v_add_u32 v%d, s%d, v%d" % (V_RW + x - 1, S_T0, V_L16))
        a("s_mul_i32 s%d, s%d, 6144" % (S_T0, S_WAVE))
        a("s_add_u32 s%d, s%d, %d" % (S_T0, S_T0, LDS_RED))
        a("v_add_u32 v%d, s%d, v%d" % (V_RR, S_T0, V_L16))

    def rowcol_off(self, vd, vt):
        a = self.a
        a("s_lshl_b32 s%d, s%d, 15" % (S_T0, S_MTO))
        a("s_add_u32 s%d, s%d, s%d" % (S_T0, S_T0, S_GB))
        a("s_lshl_b32 s%d, s%d, 7" % (S_T1, S_J))
        a("s_add_u32 s%d, s%d, s%d" % (S_T0, S_T0, S_T1))
        a("s_lshl_b32 s%d, s%d, 6" % (S_T1, S_NI))
        a("s_add_u32 s%d, s%d, s%d" % (S_T0, S_T0, S_T1))
        a("s_lshl_b32 s%d, s%d, 5" % (S_T1, S_HALF))
        a("s_add_u32 s%d, s%d, s%d" % (S_T0, S_T0, S_T1))
        a("v_and_b32 v%d, 31, v%d" % (vd, V_LANE))
        a("v_lshlrev_b32 v%d, 10, v%d" % (vd, vd))
        a("v_lshrrev_b32 v%d, 5, v%d" % (vt, V_LANE))
        a("v_lshl_add_u32 v%d, v%d, 4, v%d" % (vd, vt, vd))
        a("v_add_u32 v%d, s%d, v%d" % (vd, S_T0, vd))

    def wload64(self, wreg, pbase):
        ls = []
        for kl in range(8):
            def f(kl=kl):
                self.a("s_add_u32 s%d, s%d, 0x%x" % (S_T3, S_WOFF, pbase))
                self.a("buffer_load_dwordx4 %s, v%d, s[16:19], s%d offen offset:%d" % (
                    vr(wreg + 4 * kl, 4), V_L16 if kl < 4 else V_L16B, S_T3, (kl % 4) * 1024))
            ls.append(f)
        return ls

    def attention(self):
        a = self.a
        a("s_lshl_b32 s%d, s%d, 13" % (S_T1, S_QB))
        a("s_add_u32 s%d, s%d, s%d" % (S_T1, S_T1, S_KVS))
        a("buffer_load_dwordx4 %s, v%d, s[16:19], s%d offen" % (vr(V_Q, 4), V_DMA, S_T1))
        for c in (0, 1):
            emit_list(a, self.kv_dma(c, 0))
            emit_list(a, self.kv_dma(c, 1))
        self.stage_consts()
        a("v_mov_b32 v%d, v%d" % (V_KA, V_L16))
        a("v_and_b32 v%d, 15, v%d" % (V_VA, V_LANE))
        a("v_lshlrev_b32 v%d, 4, v%d" % (V_VA, V_VA))
        a("v_lshrrev_b32 v%d, 5, v%d" % (V_T, V_LANE))
        a("v_lshl_add_u32 v%d, v%d, 8, v%d" % (V_VA, V_T, V_VA))
        a("v_add_u32 v%d, 0x%x, v%d" % (V_VA, LDS_V, V_VA))
        a("s_mov_b32 s%d, 0x0000ffff" % S_VMASK)
        a("s_mov_b32 s%d, 0x0000ffff" % (S_VMASK + 1))
        for i in range(16):
            a("v_mov_b32 v%d, s%d" % (V_V + i, S_ONES))
        for i in range(16):
            a("v_mov_b32 v%d, 0" % (V_O + i))
        self.rowcol_off(V_T, V_T + 1)
        a("buffer_load_dwordx4 %s, v%d, s[12:15], 0 offen" % (vr(V_XR, 4), V_T))

        def rdK(t):
            a("ds_read_b128 %s, v%d offset:%d" % (vr(V_K + 4 * (t & 1), 4), V_KA, t * 1024))

        def rdV(t):
            a("s_mov_b64 exec, s[%d:%d]" % (S_VMASK, S_VMASK + 1))
            a("ds_read_b128 %s, v%d offset:%d" % (vr(V_V + 8 * (t & 1), 4), V_VA, t * 1024))
            a("ds_read_b128 %s, v%d offset:%d" % (vr(V_V + 8 * (t & 1) + 4, 4), V_VA, t * 1024 + 512))
            a("s_mov_b64 exec, -1")

        def qk(t, c):
            a("v_mfma_f32_32x32x16_bf16 %s, %s, %s, %s" % (vr(V_S + 16 * (t & 1), 16), vr(V_K + 4 * (t & 1), 4), vr(V_Q, 4), c))

        a.wait_vm("kv0")
        a("s_barrier")
        rdK(0)
        rdK(1)
        rdV(0)
        a("v_mfma_f32_32x32x16_bf16 %s, %s, %s, 0" % (vr(V_S + 16, 16), vr(V_K, 4), vr(V_Q, 4)))
        s = V_S + 16
        a("v_max3_f32 v%d, v%d, v%d, v%d" % (V_T, s, s + 1, s + 2))
        for i in range(3, 15, 2):
            a("v_max3_f32 v%d, v%d, v%d, v%d" % (V_T, V_T, s + i, s + i + 1))
        a("v_max_f32 v%d, v%d, v%d" % (V_T, V_T, s + 15))
        a("v_mov_b32 v%d, v%d" % (V_T + 1, V_T))
        a("v_permlane32_swap_b32 v%d, v%d" % (V_T, V_T + 1))
        a("v_max_f32 v%d, v%d, v%d" % (V_T, V_T, V_T + 1))
        for i in range(16):
            a("v_sub_f32 v%d, 0, v%d" % (V_C + i, V_T))
        qk(0, vr(V_C, 16))

        side = {}
        k = 0
        for c in range(2, 8):
            for which in (0, 1):
                side[k] = [lambda c=c, which=which: emit_list(a, self.kv_dma(c, which))]
                k += 1
        wl = self.wload64(W_WO, WS_PWO) + self.wload64(W_W1, WS_PW1) + self.wload64(W_W2, WS_PW2)
        for i, f in enumerate(wl):
            side[16 + i] = [f]

        for t in range(64):
            S = V_S + 16 * (t & 1)
            Vb = V_V + 8 * (t & 1)
            if t == 6:
                a.wait_vm("kv1")
                a("s_barrier")
            if t == 14:
                a.wait_vm("kv7")
                a("s_barrier")
            if t + 1 < 64:
                qk(t + 1, vr(V_C, 16))
            if t + 2 < 64:
                rdK(t + 2)
            for i in range(0, 8, 2):
                a("v_exp_f32 v%d, v%d" % (S + i, S + i))
                a("v_exp_f32 v%d, v%d" % (S + i + 1, S + i + 1))
                if i >= 2:
                    a("v_cvt_pk_bf16_f32 v%d, v%d, v%d" % (V_P + i // 2 - 1, S + i - 2, S + i - 1))
            a("v_exp_f32 v%d, v%d" % (S + 8, S + 8))
            a("v_cvt_pk_bf16_f32 v%d, v%d, v%d" % (V_P + 3, S + 6, S + 7))
            a("v_exp_f32 v%d, v%d" % (S + 9, S + 9))
            a("v_exp_f32 v%d, v%d" % (S + 10, S + 10))
            a("v_mfma_f32_32x32x16_bf16 %s, %s, %s, %s" % (vr(V_O, 16), vr(Vb, 4), vr(V_P, 4), vr(V_O, 16)))
            a("v_exp_f32 v%d, v%d" % (S + 11, S + 11))
            a("v_cvt_pk_bf16_f32 v%d, v%d, v%d" % (V_P + 4, S + 8, S + 9))
            a("v_exp_f32 v%d, v%d" % (S + 12, S + 12))
            a("v_exp_f32 v%d, v%d" % (S + 13, S + 13))
            a("v_cvt_pk_bf16_f32 v%d, v%d, v%d" % (V_P + 5, S + 10, S + 11))
            a("v_exp_f32 v%d, v%d" % (S + 14, S + 14))
            a("v_exp_f32 v%d, v%d" % (S + 15, S + 15))
            a("v_cvt_pk_bf16_f32 v%d, v%d, v%d" % (V_P + 6, S + 12, S + 13))
            for f in side.get(t, []):
                f()
            a("v_cvt_pk_bf16_f32 v%d, v%d, v%d" % (V_P + 7, S + 14, S + 15))
            if t + 1 < 64:
                rdV(t + 1)
            a("v_mfma_f32_32x32x16_bf16 %s, %s, %s, %s" % (vr(V_O, 16), vr(Vb + 4, 4), vr(V_P + 4, 4), vr(V_O, 16)))
        a("s_mov_b32 s%d, %s" % (S_T0, f32(2.0 ** 60)))
        a("v_cmp_nle_f32 vcc, v%d, s%d" % (V_O + 8, S_T0))
        a("s_cbranch_vccnz L_att_fallback")
        a.label("L_att_done", keep=True)
        a("v_rcp_f32 v%d, v%d" % (V_T, V_O + 8))
        for i in range(8):
            a("v_mul_f32 v%d, v%d, v%d" % (V_O + i, V_O + i, V_T))
        for i in range(4):
            a("v_cvt_pk_bf16_f32 v%d, v%d, v%d" % (V_P + i, V_O + 2 * i, V_O + 2 * i + 1))
        a("s_lshl_b32 s%d, s%d, 3" % (S_T0, S_QB))
        a("s_add_u32 s%d, s%d, s%d" % (S_T0, S_T0, S_WAVE))
        a("s_lshl_b32 s%d, s%d, 5" % (S_T0, S_T0))
        a("s_add_u32 s%d, s%d, s%d" % (S_T0, S_T0, S_HEAD))
        a("s_lshl_b32 s%d, s%d, 10" % (S_T0, S_T0))
        a("s_add_u32 s%d, s%d, 0x%x" % (S_T0, S_T0, WS_O))
        a("buffer_store_dwordx4 %s, v%d, s[16:19], s%d offen %s" % (vr(V_P, 4), V_L16, S_T0, STF))
        a("s_barrier")
        self.ool.append(self.att_fallback)

    def att_fallback(self):
        a = self.a
        a.label("L_att_fallback")
        a("s_nop 15")
        S = V_S
        a("v_mov_b32 v%d, v%d" % (V_T + 2, V_KA))
        a("v_mov_b32 v%d, 0xff800000" % V_T)
        a("s_mov_b32 s%d, 0" % S_FB)
        a.label("L_fb_max")
        a("ds_read_b128 %s, v%d" % (vr(V_K, 4), V_T + 2))
        a("v_add_u32 v%d, 0x400, v%d" % (V_T + 2, V_T + 2))
        a("v_mfma_f32_32x32x16_bf16 %s, %s, %s, 0" % (vr(S, 16), vr(V_K, 4), vr(V_Q, 4)))
        for i in range(0, 16, 2):
            a("v_max3_f32 v%d, v%d, v%d, v%d" % (V_T, V_T, S + i, S + i + 1))
        a("s_add_u32 s%d, s%d, 1" % (S_FB, S_FB))
        a("s_cmp_lt_u32 s%d, 64" % S_FB)
        a("s_cbranch_scc1 L_fb_max")
        a("v_mov_b32 v%d, v%d" % (V_T + 1, V_T))
        a("v_permlane32_swap_b32 v%d, v%d" % (V_T, V_T + 1))
        a("v_max_f32 v%d, v%d, v%d" % (V_T, V_T, V_T + 1))
        for i in range(16):
            a("v_sub_f32 v%d, 0, v%d" % (V_C + i, V_T))
        for i in range(16):
            a("v_mov_b32 v%d, 0" % (V_O + i))
        a("v_mov_b32 v%d, v%d" % (V_T + 2, V_KA))
        a("v_mov_b32 v%d, v%d" % (V_T + 3, V_VA))
        a("s_mov_b32 s%d, 0" % S_FB)
        a("s_nop 7")
        a.label("L_fb_main")
        a("ds_read_b128 %s, v%d" % (vr(V_K, 4), V_T + 2))
        a("s_mov_b64 exec, s[%d:%d]" % (S_VMASK, S_VMASK + 1))
        a("ds_read_b128 %s, v%d" % (vr(V_V, 4), V_T + 3))
        a("ds_read_b128 %s, v%d offset:512" % (vr(V_V + 4, 4), V_T + 3))
        a("s_mov_b64 exec, -1")
        a("v_add_u32 v%d, 0x400, v%d" % (V_T + 2, V_T + 2))
        a("v_add_u32 v%d, 0x400, v%d" % (V_T + 3, V_T + 3))
        a("v_mfma_f32_32x32x16_bf16 %s, %s, %s, %s" % (vr(S, 16), vr(V_K, 4), vr(V_Q, 4), vr(V_C, 16)))
        for i in range(16):
            a("v_exp_f32 v%d, v%d" % (S + i, S + i))
        for i in range(8):
            a("v_cvt_pk_bf16_f32 v%d, v%d, v%d" % (V_P + i, S + 2 * i, S + 2 * i + 1))
        a("v_mfma_f32_32x32x16_bf16 %s, %s, %s, %s" % (vr(V_O, 16), vr(V_V, 4), vr(V_P, 4), vr(V_O, 16)))
        a("v_mfma_f32_32x32x16_bf16 %s, %s, %s, %s" % (vr(V_O, 16), vr(V_V + 4, 4), vr(V_P + 4, 4), vr(V_O, 16)))
        a("s_add_u32 s%d, s%d, 1" % (S_FB, S_FB))
        a("s_cmp_lt_u32 s%d, 64" % S_FB)
        a("s_nop 15")
        a("s_cbranch_scc1 L_fb_main")
        a("s_branch L_att_done")

    def issue_loads(self, loads):
        for (reg, voff, soff_expr, imm) in loads:
            self.a("buffer_load_dwordx4 %s, v%d, s[16:19], s%d offen%s %s" % (
                vr(reg, 4), voff, soff_expr, (" offset:%d" % imm) if imm else "", LDF))

    def process_loads(self, loads, writes, stats=False, pre=None):
        a = self.a
        n = self.nlab
        self.nlab += 1
        a("s_mov_b32 s%d, 0" % S_RETRY)
        a.label("L_proc%d" % n, keep=True)
        mx = V_T
        if stats:
            a("v_mov_b32 v%d, 0" % (V_T + 2))
            a("v_mov_b32 v%d, 0" % (V_T + 3))
        for i, ((reg, voff, so, imm), (wa, woff)) in enumerate(zip(loads, writes)):
            if i == 0:
                a("v_max3_u32 v%d, v%d, v%d, v%d" % (mx, reg, reg + 1, reg + 2))
                a("v_max_u32 v%d, v%d, v%d" % (mx, mx, reg + 3))
            else:
                a("v_max3_u32 v%d, v%d, v%d, v%d" % (mx, mx, reg, reg + 1))
                a("v_max3_u32 v%d, v%d, v%d, v%d" % (mx, mx, reg + 2, reg + 3))
            a("ds_write_b128 v%d, %s offset:%d" % (wa, vr(reg, 4), woff))
            if stats:
                for r in range(4):
                    a("v_dot2c_f32_bf16 v%d, s%d, v%d" % (V_T + 2, S_ONES, reg + r))
                    a("v_dot2c_f32_bf16 v%d, v%d, v%d" % (V_T + 3, reg + r, reg + r))
        a("v_cmp_eq_u32 vcc, -1, v%d" % mx)
        a("s_cbranch_vccnz L_retry%d" % n)
        a.label("L_cont%d" % n, keep=True)

        def retry():
            a.label("L_retry%d" % n)
            a("s_add_u32 s%d, s%d, 1" % (S_RETRY, S_RETRY))
            a("s_cmp_gt_u32 s%d, %d" % (S_RETRY, RETRY_MAX))
            a("s_cbranch_scc1 L_cont%d" % n)
            a("s_waitcnt vmcnt(0) lgkmcnt(0)")
            a("s_sleep 1")
            if pre:
                pre()
            self.issue_loads(loads)
            a("s_waitcnt vmcnt(0)")
            a("s_branch L_proc%d" % n)
        self.ool.append(retry)

    def load_tile64(self, wsbase, stats):
        a = self.a

        def pre():
            a("s_add_u32 s%d, s%d, 0x%x" % (S_T2, S_GB, wsbase))
        pre()
        loads = [(V_A + 4 * i, V_OFF + i, S_T2, 0) for i in range(8)]
        writes = [(V_OFF + i, 0) for i in range(8)]
        self.issue_loads(loads)
        self.process_loads(loads, writes, stats, pre)
        if stats:
            a("s_and_b32 s%d, s%d, 3" % (S_T0, S_WAVE))
            a("s_lshl_b32 s%d, s%d, 10" % (S_T0, S_T0))
            a("s_lshr_b32 s%d, s%d, 2" % (S_T1, S_WAVE))
            a("s_lshl_b32 s%d, s%d, 8" % (S_T1, S_T1))
            a("s_add_u32 s%d, s%d, s%d" % (S_T0, S_T0, S_T1))
            a("s_add_u32 s%d, s%d, %d" % (S_T0, S_T0, LDS_ST))
            a("v_and_b32 v%d, 31, v%d" % (V_T + 4, V_LANE))
            a("v_lshlrev_b32 v%d, 3, v%d" % (V_T + 4, V_T + 4))
            a("v_lshrrev_b32 v%d, 5, v%d" % (V_T + 5, V_LANE))
            a("v_lshl_add_u32 v%d, v%d, 9, v%d" % (V_T + 4, V_T + 5, V_T + 4))
            a("v_add_u32 v%d, s%d, v%d" % (V_T + 4, S_T0, V_T + 4))
            a("ds_write_b64 v%d, %s" % (V_T + 4, vr(V_T + 2, 2)))
        a("s_waitcnt lgkmcnt(0)")
        a("s_barrier")

    def row_stats(self, mt_sreg_or_const, dst_mean, dst_var, tmp):
        a = self.a
        ad = tmp + 16
        a("v_and_b32 v%d, 31, v%d" % (ad, V_LANE))
        a("v_lshlrev_b32 v%d, 3, v%d" % (ad, ad))
        if isinstance(mt_sreg_or_const, str):
            a("s_lshl_b32 s%d, %s, 8" % (S_T0, mt_sreg_or_const))
            a("s_add_u32 s%d, s%d, %d" % (S_T0, S_T0, LDS_ST))
            a("v_add_u32 v%d, s%d, v%d" % (ad, S_T0, ad))
        else:
            a("v_add_u32 v%d, %d, v%d" % (ad, LDS_ST + 256 * mt_sreg_or_const, ad))
        for s in range(8):
            a("ds_read_b64 %s, v%d offset:%d" % (vr(tmp + 2 * s, 2), ad, s * 512))
        for step in (4, 2, 1):
            for s in range(step):
                a("v_add_f32 v%d, v%d, v%d" % (tmp + 2 * s, tmp + 2 * s, tmp + 2 * (s + step)))
                a("v_add_f32 v%d, v%d, v%d" % (tmp + 2 * s + 1, tmp + 2 * s + 1, tmp + 2 * (s + step) + 1))
        a("v_mul_f32 v%d, %s, v%d" % (dst_mean, f32(1.0 / 512), tmp))
        a("v_mul_f32 v%d, %s, v%d" % (dst_var, f32(1.0 / 512), tmp + 1))
        a("v_fma_f32 v%d, -v%d, v%d, v%d" % (dst_var, dst_mean, dst_mean, dst_var))
        a("v_max_f32 v%d, 0, v%d" % (dst_var, dst_var))

    def mma64(self, wreg):
        a = self.a

        def rd(kl):
            b = V_FR + 8 * (kl & 1)
            a("ds_read_b128 %s, v%d offset:%d" % (vr(b, 4), V_RA, kl * 1024))
            a("ds_read_b128 %s, v%d offset:%d" % (vr(b + 4, 4), V_RB, kl * 1024))
        rd(0)
        for kl in range(8):
            if kl + 1 < 8:
                rd(kl + 1)
            b = V_FR + 8 * (kl & 1)
            for t in range(2):
                acc = vr(V_ACC + 16 * t, 16)
                a("v_mfma_f32_32x32x16_bf16 %s, %s, %s, %s" % (acc, vr(wreg + 4 * kl, 4), vr(b + 4 * t, 4), acc if kl else "0"))

    def reduce4(self):
        a = self.a
        for x in (1, 2, 3):
            r = V_ACC + 8 * x
            a("ds_write_b128 v%d, %s" % (V_RW + x - 1, vr(r, 4)))
            a("ds_write_b128 v%d, %s offset:1024" % (V_RW + x - 1, vr(r + 4, 4)))
        a("s_waitcnt lgkmcnt(0)")
        a("s_barrier")
        for q in range(6):
            a("ds_read_b128 %s, v%d offset:%d" % (vr(V_RED + 4 * q, 4), V_RR, q * 1024))
        for x in range(3):
            for i in range(8):
                a("v_add_f32 v%d, v%d, v%d" % (V_ACC + i, V_ACC + i, V_RED + 8 * x + i))

    def pack_store(self, src, dst4, voff, soff, srd="s[16:19]", flag=STF):
        a = self.a
        for i in range(4):
            a("v_cvt_pk_bf16_f32 v%d, v%d, v%d" % (dst4 + i, src + 2 * i, src + 2 * i + 1))
        a("buffer_store_dwordx4 %s, v%d, %s, %s offen %s" % (vr(dst4, 4), voff, srd, soff, flag))

    def s3(self):
        a = self.a
        self.load_tile64(WS_O, False)
        self.mma64(W_WO)
        self.reduce4()
        for i in range(4):
            a("v_lshlrev_b32 v%d, 16, v%d" % (V_H + 2 * i, V_XR + i))
            a("v_and_b32 v%d, 0xffff0000, v%d" % (V_H + 2 * i + 1, V_XR + i))
        for i in range(8):
            a("v_add_f32 v%d, v%d, v%d" % (V_H + i, V_H + i, V_ACC + i))
        a("s_add_u32 s%d, s%d, 0x%x" % (S_T0, S_OUTBLK, WS_H))
        self.pack_store(V_H, V_T + 6, V_L16, "s%d" % S_T0)

    def s4(self):
        a = self.a
        CS = 48
        for i in range(4):
            a("v_mov_b32 v%d, s%d" % (V_FR + i, S_ONES))
        for kl in range(8):
            a("v_mfma_f32_32x32x16_bf16 %s, %s, %s, %s" % (vr(CS, 16), vr(W_W1 + 4 * kl, 4), vr(V_FR, 4), vr(CS, 16) if kl else "0"))
        self.load_tile64(WS_H, True)
        self.mma64(W_W1)
        MA, VA_, MB_, VB_ = V_T + 6, V_T + 7, V_T + 8, V_T + 9
        self.row_stats("s%d" % S_MTO, MA, VA_, V_A)
        a("s_xor_b32 s%d, s%d, 1" % (S_T1, S_MTO))
        self.row_stats("s%d" % S_T1, MB_, VB_, V_A)
        for i in range(16):
            a("v_fma_f32 v%d, -v%d, v%d, v%d" % (V_ACC + i, MA, CS + i, V_ACC + i))
        for i in range(16):
            a("v_fma_f32 v%d, -v%d, v%d, v%d" % (V_ACC + 16 + i, MB_, CS + i, V_ACC + 16 + i))
        self.reduce4()
        R, RR = V_T + 10, V_T + 11
        a("v_add_f32 v%d, %s, v%d" % (R, f32(1e-5), VA_))
        a("v_rsq_f32 v%d, v%d" % (R, R))
        a("v_mul_f32 v%d, v%d, v%d" % (RR, R, R))
        a("v_mul_f32 v%d, v%d, v%d" % (RR, RR, VA_))
        a("v_add_f32 v%d, %s, v%d" % (RR, f32(1e-5), RR))
        a("v_rsq_f32 v%d, v%d" % (RR, RR))
        a("v_mul_f32 v%d, v%d, v%d" % (RR, RR, R))
        for i in range(8):
            a("v_mul_f32 v%d, v%d, v%d" % (V_ACC + i, V_ACC + i, RR))
        emit_list(a, gelu([V_ACC + i for i in range(8)], [V_ACC + 8 + i for i in range(8)]))
        for i in range(8):
            a("v_sub_f32 v%d, v%d, v%d" % (V_Y + i, V_H + i, MA))
            a("v_mul_f32 v%d, v%d, v%d" % (V_Y + i, V_Y + i, R))
        a("s_lshr_b32 s%d, s%d, 2" % (S_T0, S_J))
        a("s_add_u32 s%d, s%d, 1" % (S_T0, S_T0))
        a("s_sub_u32 s%d, 0, s%d" % (S_T1, S_T0))
        a("s_bitcmp1_b32 s%d, 1" % S_J)
        a("s_cselect_b32 s%d, s%d, s%d" % (S_DELTA, S_T1, S_T0))
        a("s_lshl_b32 s%d, s%d, 1" % (S_T0, S_G))
        a("s_add_u32 s%d, s%d, s%d" % (S_T0, S_T0, S_MTO))
        a("s_lshl_b32 s%d, s%d, 5" % (S_T0, S_T0))
        a("s_add_u32 s%d, s%d, s%d" % (S_T0, S_T0, S_DELTA))
        t0, t1 = V_T, V_T + 1
        a("v_and_b32 v%d, 31, v%d" % (t0, V_LANE))
        a("v_add_u32 v%d, s%d, v%d" % (t0, S_T0, t0))
        a("v_cmp_gt_u32 vcc, 0x800, v%d" % t0)
        for i in range(8):
            a("v_cndmask_b32 v%d, 0, v%d, vcc" % (V_ACC + i, V_ACC + i))
        a("v_and_b32 v%d, 0x7ff, v%d" % (t0, t0))
        a("v_lshrrev_b32 v%d, 5, v%d" % (t1, t0))
        a("v_lshlrev_b32 v%d, 15, v%d" % (t1, t1))
        a("v_and_b32 v%d, 31, v%d" % (t0, t0))
        a("v_lshl_add_u32 v%d, v%d, 4, v%d" % (t1, t0, t1))
        a("v_and_b32 v%d, 32, v%d" % (t0, V_LANE))
        a("v_lshl_add_u32 v%d, v%d, 4, v%d" % (t1, t0, t1))
        a("s_and_b32 s%d, s%d, 0x7fff" % (S_T0, S_OUTBLK))
        a("s_add_u32 s%d, s%d, 0x%x" % (S_T0, S_T0, WS_A2))
        self.pack_store(V_ACC, V_T + 6, t1, "s%d" % S_T0)

    def s5(self):
        a = self.a
        self.load_tile64(WS_A2, False)
        self.mma64(W_W2)
        self.reduce4()
        for i in range(8):
            a("v_add_f32 v%d, v%d, v%d" % (V_Y + i, V_Y + i, V_ACC + i))
        a("s_add_u32 s%d, s%d, 0x%x" % (S_T0, S_OUTBLK, WS_X1))
        self.pack_store(V_Y, V_T + 6, V_L16, "s%d" % S_T0)
        for i in range(8):
            a("v_add_f32 v%d, v%d, v%d" % (V_H + i, V_H + i, V_Y + i))

    def s6(self):
        a = self.a
        global V_T
        oldT = V_T
        V_T = 48
        SAVE = 64
        for i, r in enumerate((V_RA, V_RB, V_RW, V_RW + 1, V_RW + 2, V_RR)):
            a("v_mov_b32 v%d, v%d" % (SAVE + i, r))
        a("s_cmp_eq_u32 s%d, 7" % S_WAVE)
        a("s_cbranch_scc1 L_s6_now")
        a("s_mul_i32 s%d, s%d, 7" % (S_T0, S_J))
        a("s_add_u32 s%d, s%d, s%d" % (S_T0, S_T0, S_WAVE))
        a("s_lshl_b32 s%d, s%d, 15" % (S_T3, S_T0))
        a("s_add_u32 s%d, s%d, 0x%x" % (S_T3, S_T3, WS_PW3))
        a("s_nop 1")
        for ks in range(32):
            if ks and ks % 8 == 0:
                a("s_add_u32 s%d, s%d, 0x2000" % (S_T3, S_T3))
            a("buffer_load_dwordx4 %s, v%d, s[16:19], s%d offen offset:%d" % (
                vr(W_W3 + 4 * ks, 4), V_L16 if (ks % 8) < 4 else V_L16B, S_T3, (ks % 4) * 1024))
        a("s_waitcnt vmcnt(0)")
        a.label("L_s6_now", keep=True)
        a("s_waitcnt vmcnt(0)")
        self.load_tile64(WS_X1, True)
        a("s_cmp_eq_u32 s%d, 7" % S_WAVE)
        a("s_cbranch_scc1 L_s6_done")
        CS = 32
        for i in range(4):
            a("v_mov_b32 v%d, s%d" % (V_FR + i, S_ONES))
        for ks in range(32):
            a("v_mfma_f32_32x32x16_bf16 %s, %s, %s, %s" % (vr(CS, 16), vr(W_W3 + 4 * ks, 4), vr(V_FR, 4), vr(CS, 16) if ks else "0"))

        def rd(ks):
            b = V_FR + 8 * (ks & 1)
            a("ds_read_b128 %s, v%d offset:%d" % (vr(b, 4), V_L16, ks * 1024))
            a("ds_read_b128 %s, v%d offset:%d" % (vr(b + 4, 4), V_L16, 32768 + ks * 1024))
        rd(0)
        for ks in range(32):
            if ks + 1 < 32:
                rd(ks + 1)
            b = V_FR + 8 * (ks & 1)
            for t in range(2):
                acc = vr(V_ACC + 16 * t, 16)
                a("v_mfma_f32_32x32x16_bf16 %s, %s, %s, %s" % (acc, vr(W_W3 + 4 * ks, 4), vr(b + 4 * t, 4), acc if ks else "0"))
        a("s_mul_i32 s%d, s%d, 7" % (S_T1, S_J))
        a("s_add_u32 s%d, s%d, s%d" % (S_T1, S_T1, S_WAVE))
        a("s_lshl_b32 s%d, s%d, 11" % (S_T1, S_T1))
        a("s_mul_i32 s%d, s%d, %d" % (S_T2, S_G, 224 * 1024))
        a("s_add_u32 s%d, s%d, s%d" % (S_T2, S_T2, S_T1))
        a("s_add_u32 s%d, s%d, 0x%x" % (S_T2, S_T2, WS_F))
        a("s_add_u32 s%d, s%d, %d" % (S_T3, S_T2, 112 * 1024))
        for t in range(2):
            M, Vv = V_T + 6, V_T + 7
            self.row_stats(t, M, Vv, 12)
            a("v_add_f32 v%d, %s, v%d" % (Vv, f32(1e-5), Vv))
            a("v_rsq_f32 v%d, v%d" % (Vv, Vv))
            acc = V_ACC + 16 * t
            for i in range(16):
                a("v_fma_f32 v%d, -v%d, v%d, v%d" % (acc + i, M, CS + i, acc + i))
            for i in range(16):
                a("v_mul_f32 v%d, v%d, v%d" % (acc + i, acc + i, Vv))
            emit_list(a, gelu([acc + i for i in range(16)], [12 + i for i in range(16)]))
            for h in range(2):
                d = V_T + 8 + 4 * h
                for i in range(4):
                    a("v_cvt_pk_bf16_f32 v%d, v%d, v%d" % (d + i, acc + 8 * h + 2 * i, acc + 8 * h + 2 * i + 1))
                a("buffer_store_dwordx4 %s, v%d, s[16:19], s%d offen offset:%d %s" % (
                    vr(d, 4), V_L16, S_T2 + t, h * 1024, STF))
        a.label("L_s6_done", keep=True)
        a("s_waitcnt lgkmcnt(0)")
        a("s_barrier")
        V_T = oldT
        self.SAVE = SAVE

    def s7(self):
        a = self.a
        global V_T, V_RW, V_RR, V_RED
        SAVE = self.SAVE
        for i in range(6):
            a("v_mov_b32 v%d, v%d" % (128 + i, SAVE + i))
        V_RW, V_RR = 130, 133
        V_T = 134
        AS = [16, 44]
        a("s_lshl_b32 s%d, s%d, 1" % (S_T0, S_J))
        a("s_add_u32 s%d, s%d, s%d" % (S_T0, S_T0, S_NI))
        a("s_mul_i32 s%d, s%d, 112" % (S_T0, S_T0))
        a("s_mul_i32 s%d, s%d, 28" % (S_T1, S_KQ))
        a("s_add_u32 s%d, s%d, s%d" % (S_T0, S_T0, S_T1))
        a("s_lshl_b32 s%d, s%d, 10" % (S_T3, S_T0))
        a("s_add_u32 s%d, s%d, 0x%x" % (S_T3, S_T3, WS_PW4))
        a("s_waitcnt vmcnt(0)")
        for kl in range(28):
            if kl and kl % 8 == 0:
                a("s_add_u32 s%d, s%d, 0x2000" % (S_T3, S_T3))
            a("buffer_load_dwordx4 %s, v%d, s[16:19], s%d offen offset:%d" % (
                vr(W_W4 + 4 * kl, 4), V_L16 if (kl % 8) < 4 else V_L16B, S_T3, (kl % 4) * 1024))
        S_AB = 46
        a("s_lshl_b32 s%d, s%d, 1" % (S_T0, S_G))
        a("s_add_u32 s%d, s%d, s%d" % (S_T0, S_T0, S_NI))
        a("s_mul_i32 s%d, s%d, 112" % (S_T0, S_T0))
        a("s_add_u32 s%d, s%d, s%d" % (S_T0, S_T0, S_T1))
        a("s_lshl_b32 s%d, s%d, 10" % (S_T0, S_T0))
        for c in range(4):
            a("s_add_u32 s%d, s%d, 0x%x" % (S_AB + c, S_T0, WS_F + c * 7168))
        WA, RA, RB = 12, 13, 14
        a("s_lshl_b32 s%d, s%d, 2" % (S_T0, S_NI))
        a("s_add_u32 s%d, s%d, s%d" % (S_T0, S_T0, S_KQ))
        a("s_mul_i32 s%d, s%d, 7168" % (S_T0, S_T0))
        a("v_add_u32 v%d, s%d, v%d" % (WA, S_T0, V_L16))
        a("s_lshl_b32 s%d, s%d, 2" % (S_T0, S_MTO))
        a("s_add_u32 s%d, s%d, s%d" % (S_T0, S_T0, S_KQ))
        a("s_mul_i32 s%d, s%d, 7168" % (S_T1, S_T0))
        a("v_add_u32 v%d, s%d, v%d" % (RA, S_T1, V_L16))
        a("s_xor_b32 s%d, s%d, 4" % (S_T0, S_T0))
        a("s_mul_i32 s%d, s%d, 7168" % (S_T1, S_T0))
        a("v_add_u32 v%d, s%d, v%d" % (RB, S_T1, V_L16))

        def loads(c):
            return [(AS[c & 1] + 4 * i, V_L16 if i < 4 else V_L16B, S_AB + c, (i % 4) * 1024) for i in range(7)]

        def writes(c):
            return [(WA, (c & 1) * 57344 + i * 1024) for i in range(7)]
        self.issue_loads(loads(0))
        self.issue_loads(loads(1))
        for c in range(4):
            self.process_loads(loads(c), writes(c))
            a("s_waitcnt lgkmcnt(0)")
            if c + 2 < 4:
                self.issue_loads(loads(c + 2))
            a("s_barrier")

            def rd(i):
                b = V_FR + 8 * (i & 1)
                off = (c & 1) * 57344 + i * 1024
                a("ds_read_b128 %s, v%d offset:%d" % (vr(b, 4), RA, off))
                a("ds_read_b128 %s, v%d offset:%d" % (vr(b + 4, 4), RB, off))
            rd(0)
            for i in range(7):
                if i + 1 < 7:
                    rd(i + 1)
                b = V_FR + 8 * (i & 1)
                kl = 7 * c + i
                for t in range(2):
                    acc = vr(V_ACC + 16 * t, 16)
                    a("v_mfma_f32_32x32x16_bf16 %s, %s, %s, %s" % (acc, vr(W_W4 + 4 * kl, 4), vr(b + 4 * t, 4), acc if kl else "0"))
        self.reduce4()
        for i in range(8):
            a("v_add_f32 v%d, v%d, v%d" % (V_H + i, V_H + i, V_ACC + i))
        self.rowcol_off(V_T, V_T + 1)
        self.pack_store(V_H, V_T + 4, V_T, "0", srd="s[20:23]", flag="")

    def gen(self):
        a = self.a
        kernel_begin(a, NAME)
        self.prologue()
        self.attention()
        self.s3()
        self.s4()
        self.s5()
        self.s6()
        self.s7()
        a.vq, a.lq = [], []
        a.label("L_k2_end")
        a("s_endpgm")
        return None


def gen(a):
    k = K2(a)
    snap = {}
    orig_append = k.ool.append

    class OOL(list):
        def append(self, f):
            g = dict(V_T=V_T, V_RW=V_RW, V_RR=V_RR, V_RED=V_RED)
            list.append(self, (f, g))
    k.ool = OOL()
    k.gen()
    for f, g in k.ool:
        globals().update(g)
        a.vq, a.lq, a.win = [], [], []
        f()
        a.vq, a.lq = [], []
    return kernel_desc(NAME, a.maxv + 1, a.maxs + 1)
```

```python
import sys
sys.path.insert(0, "gen")
from common import *
import k0, k1, k2

HEADER = open("sequential_preLN__mha_block__mixer_s_mlp__prompt.s.ref").read().split("\n")

def build(out):
    mods = [k0, k1, k2]
    lines = [l for l in HEADER if l.startswith(";") and "@launch" not in l and "Override launch" not in l and "grid=ceil" not in l]
    for m in mods:
        lines.append("; @launch kernel=%s grid=(%d,1,1) block=(%d,1,1) lds=%d" % (m.NAME, m.GRID, m.BLOCK, m.LDS))
    a = Asm()
    a.raw('.amdgcn_target "amdgcn-amd-amdhsa--gfx950"')
    a.raw(".text")
    descs = []
    for m in mods:
        n0 = a.ninstr
        descs.append(m.gen(a))
        print(m.NAME, "instrs", a.ninstr - n0, "maxv", a.maxv, "maxs", a.maxs)
    txt = "\n".join(lines) + "\n" + a.text() + '.section .rodata,"a"\n' + "\n".join(descs) + "\n"
    open(out, "w").write(txt)

build(sys.argv[1] if len(sys.argv) > 1 else "sequential_preLN__mha_block__mixer_s_mlp__prompt.s")
```
